```python
import torch

def _softmax(x, axis=-1):
    return torch.softmax(x, dim=axis)
def _gelu(x):
    return torch.nn.functional.gelu(x, approximate="tanh")
def _silu(x):
    return torch.nn.functional.silu(x)
def _sigmoid(x):
    return torch.sigmoid(x)
def _layernorm(x, axis=-1, eps=1e-5):
    m = x.mean(dim=axis, keepdim=True)
    v = x.var(dim=axis, keepdim=True, unbiased=False)
    return (x - m) / torch.sqrt(v + eps)
def _scatter_add(tgt, idx, src, axis=0):
    return tgt.clone().index_add_(axis, idx, src)
def _segment_sum(src, seg, n):
    out = torch.zeros((n,) + src.shape[1:], dtype=src.dtype)
    return out.index_add_(0, seg, src)
def _pad(x, pw):
    flat = tuple(v for pair in reversed(pw) for v in pair)
    return torch.nn.functional.pad(x, flat)

kernel_name = 'recurrent_scan__ssm_conv_s4d__dense_activation_squared_relu__prompt'

def setup_inputs():

    _w = (lambda a: (lambda t: t.to(torch.bfloat16) if t.is_floating_point() else t)(torch.as_tensor(a)))
    def _A_setup():
        Bsz, L, D, N = 1, 2048, 448, 256
        return {
            "u": _w((lambda *s: torch.randn(*s, dtype=torch.bfloat16) * 0.05)(Bsz, L, D)),
            "log_A_real": _w((lambda *s: torch.randn(*s, dtype=torch.bfloat16) * 3.2)(D, N) * 0.5),
            "A_imag": _w((lambda *s: torch.randn(*s, dtype=torch.bfloat16) * 0.05)(D, N) * 3.14),
            "C_real": _w((lambda *s: torch.randn(*s, dtype=torch.bfloat16) * 0.2)(D, N) / N ** 0.5),
            "C_imag": _w((lambda *s: torch.randn(*s, dtype=torch.bfloat16) * 0.2)(D, N) / N ** 0.5),
            "log_dt": _w((lambda *s: torch.randn(*s, dtype=torch.bfloat16) * 0.05)(D) * 0.5 - 4.0),
            "D_skip": _w((lambda *s: torch.randn(*s, dtype=torch.bfloat16) * 0.05)(D)),
        }
    _A_in = _A_setup()

    def _B_setup():
        B, S, D, F = 1, 2048, 448, 1792
        return {
            "x": _w((lambda *s: torch.randn(*s, dtype=torch.bfloat16) * 0.05)(B, S, D)),
            "w1": _w((lambda *s: torch.randn(*s, dtype=torch.bfloat16) * 0.05)(D, F)),
            "b1": _w((lambda *s: torch.randn(*s, dtype=torch.bfloat16) * 0.4)(F)),
            "w2": _w((lambda *s: torch.randn(*s, dtype=torch.bfloat16) * 0.05)(F, D)),
            "b2": _w((lambda *s: torch.randn(*s, dtype=torch.bfloat16) * 0.8)(D)),
        }
    _B_in = _B_setup()

    return {
        "A_u": _A_in["u"],
        "A_log_A_real": _A_in["log_A_real"],
        "A_A_imag": _A_in["A_imag"],
        "A_C_real": _A_in["C_real"],
        "A_C_imag": _A_in["C_imag"],
        "A_log_dt": _A_in["log_dt"],
        "A_D_skip": _A_in["D_skip"],
        "B_x": _B_in["x"],
        "B_w1": _B_in["w1"],
        "B_b1": _B_in["b1"],
        "B_w2": _B_in["w2"],
        "B_b2": _B_in["b2"],
    }

def reference(A_u, A_log_A_real, A_A_imag, A_C_real, A_C_imag, A_log_dt, A_D_skip, B_x, B_w1, B_b1, B_w2, B_b2):
    def _A_ref(u, log_A_real, A_imag, C_real, C_imag, log_dt, D_skip):
        L = u.shape[1]
        dt = torch.exp(log_dt)
        A = -torch.exp(log_A_real) + 1j * A_imag
        C = (C_real + 1j * C_imag) * dt[:, None]
        pos = (lambda x, dt: x.to(dt))(torch.arange(L), log_dt.dtype)
        P = torch.exp((A * dt[:, None])[:, :, None] * pos[None, None, :])
        K = 2.0 * torch.einsum("dn,dnl->dl", C, P).real
        L2 = 2 * L
        u_t = (lambda x, *d: x.permute(*d))(u, 0, 2, 1)
        Kf = (lambda x, *a, **k: torch.fft.rfft(x.float(), *a, **k))(K, L2)
        Uf = (lambda x, *a, **k: torch.fft.rfft(x.float(), *a, **k))(u_t, L2)
        y = (lambda x, *a, **k: torch.fft.irfft(x, *a, **k).to(torch.bfloat16))(Uf * Kf[None, :, :], L2)[:, :, :L]
        y = (lambda x, *d: x.permute(*d))(y, 0, 2, 1)
        return y + u * D_skip[None, None, :]

    def _B_ref(x, w1, b1, w2, b2):
        h = torch.einsum("bsd,df->bsf", x, w1) + b1
        zero = torch.zeros_like(h)
        r = torch.where(h > zero, h, zero)
        h = r * r
        out = torch.einsum("bsf,fd->bsd", h, w2) + b2
        return out

    x = A_u
    xn = _layernorm(x, axis=-1)
    s = _A_ref(xn, A_log_A_real, A_A_imag, A_C_real, A_C_imag, A_log_dt, A_D_skip)
    g = _silu(_B_ref(xn, B_w1, B_b1, B_w2, B_b2))
    return x + s * g
```

```python
import sys, math
NAME = "recurrent_scan__ssm_conv_s4d__dense_activation_squared_relu__prompt"
L, D, NS, F = 2048, 448, 256, 1792
WS_XN  = 0x0000000
WS_XNT = 0x0200000
WS_W1  = 0x0400000
WS_W2  = 0x0600000
WS_KC  = 0x0800000
WS_H   = 0x0A00000
WS_ST  = 0x1200000
WS_SIZE = 0x1400000

out = []
def e(s): out.append("    " + s)
def lab(s): out.append(s + ":")
def nop(n):
    while n > 0:
        k = min(n, 16); e(f"s_nop {k-1}"); n -= k

LOG2E = 1.4426950408889634
INV2PI = 0.15915494309189535
def fhex(x):
    import struct
    return "0x%08x" % struct.unpack("<I", struct.pack("<f", x))[0]

def srd(sd, sp, nbytes, add=0):
    if add:
        e(f"s_add_u32 s{sd}, s{sp}, {hex(add)}")
        e(f"s_addc_u32 s{sd+1}, s{sp+1}, 0")
    else:
        e(f"s_mov_b32 s{sd}, s{sp}")
        e(f"s_mov_b32 s{sd+1}, s{sp+1}")
    e(f"s_mov_b32 s{sd+2}, {hex(nbytes)}")
    e(f"s_mov_b32 s{sd+3}, 0x00020000")

def load_ptrs():
    e("s_load_dwordx16 s[4:19], s[0:1], 0")
    e("s_load_dwordx8 s[20:27], s[0:1], 64")
    e("s_load_dwordx4 s[28:31], s[0:1], 96")
    e("s_load_dwordx2 s[32:33], s[0:1], 112")
    e("s_waitcnt lgkmcnt(0)")
P_U, P_LOGA, P_AIM, P_CR, P_CI, P_LOGDT, P_DSK, P_BX, P_W1, P_B1, P_W2, P_B2, P_OUT, P_DBG, P_WS = range(4, 34, 2)

def bf16r(v, tmp=None):
    e(f"v_cvt_pk_bf16_f32 {v}, {v}, {v}")
    e(f"v_lshlrev_b32 {v}, 16, {v}")

N_KG, N_LN, N_T1, N_T2 = 448, 64, 392, 392
def kernel1():
    out.append(".globl prep_kernel")
    out.append(".p2align 8")
    out.append(".type prep_kernel,@function")
    lab("prep_kernel")
    load_ptrs()
    e(f"s_cmp_lt_u32 s2, {N_KG}")
    e("s_cbranch_scc1 P_KGEN")
    e(f"s_cmp_lt_u32 s2, {N_KG+N_LN}")
    e("s_cbranch_scc1 P_LN")
    e(f"s_cmp_lt_u32 s2, {N_KG+N_LN+N_T1}")
    e("s_cbranch_scc1 P_T1")
    e(f"s_cmp_lt_u32 s2, {N_KG+N_LN+N_T1+N_T2}")
    e("s_cbranch_scc1 P_T2")
    e("s_endpgm")
    lab("P_KGEN")
    srd(36, P_LOGA, D*NS*2); srd(40, P_AIM, D*NS*2); srd(44, P_CR, D*NS*2); srd(48, P_CI, D*NS*2)
    srd(52, P_LOGDT, D*2); srd(56, P_WS, D*1024*4, WS_KC)
    e("v_and_b32 v1, 63, v0")
    e("v_lshrrev_b32 v2, 6, v0")
    e("s_nop 0")
    e("v_readfirstlane_b32 s60, v2")
    e("v_mov_b32 v3, 0")
    e("s_lshl_b32 s61, s2, 1")
    e("buffer_load_ushort v4, v3, s[52:55], s61 offen")
    e("s_lshl_b32 s62, 1, s60")
    e("s_lshl_b32 s63, 16, s60")
    e("s_lshl_b32 s64, 128, s60")
    e("s_cmp_eq_u32 s60, 0")
    e("s_cselect_b32 s64, 0, s64")
    e("v_cvt_f32_u32 v5, s62")
    e("v_cvt_f32_u32 v6, s63")
    e("v_cvt_f32_u32 v7, s64")
    e("v_lshrrev_b32 v8, 4, v1")
    e("v_mul_u32_u24 v8, 1088, v8")
    e("v_and_b32 v9, 3, v1")
    e("v_mul_u32_u24 v9, 272, v9")
    e("v_add_u32 v8, v8, v9")
    e("v_bfe_u32 v9, v1, 2, 2")
    e("v_lshlrev_b32 v9, 2, v9")
    e("v_add_u32 v8, v8, v9")
    e("v_mul_u32_u24 v9, 17408, v2")
    e("v_add_u32 v8, v8, v9")
    e("v_lshrrev_b32 v10, 4, v1")
    e("v_mul_u32_u24 v10, 272, v10")
    e("v_and_b32 v11, 15, v1")
    e("v_lshlrev_b32 v11, 4, v11")
    e("v_add_u32 v10, v10, v11")
    e("v_add_u32 v10, v10, v9")
    e("s_waitcnt vmcnt(0)")
    e("v_lshlrev_b32 v4, 16, v4")
    e(f"v_mul_f32 v4, {fhex(LOG2E)}, v4")
    e("v_exp_f32 v4, v4")
    e("s_nop 0")
    bf16r("v4")
    for r in range(12, 16): e(f"v_mov_b32 v{r}, 0")
    e("s_lshl_b32 s61, s2, 9")
    e("v_lshlrev_b32 v11, 1, v1")
    AR, AI, BR, BI = 0, 4352, 8704, 13056
    def cexp(tv, dr, di, t1, t2):
        e(f"v_mul_f32 {t1}, v20, {tv}")
        e(f"v_mul_f32 {t1}, {fhex(LOG2E)}, {t1}")
        e(f"v_exp_f32 {t1}, {t1}")
        e(f"v_mul_f32 {t2}, v21, {tv}")
        e(f"v_mul_f32 {t2}, {fhex(INV2PI)}, {t2}")
        e(f"v_fract_f32 {t2}, {t2}")
        e(f"v_cos_f32 {dr}, {t2}")
        e(f"v_sin_f32 {di}, {t2}")
        e("s_nop 0")
        e(f"v_mul_f32 {dr}, {t1}, {dr}")
        e(f"v_mul_f32 {di}, {t1}, {di}")
    def cmul(xr, xi, er, ei, t):
        e(f"v_mul_f32 {t}, {xr}, {er}")
        e(f"v_fma_f32 {t}, -{xi}, {ei}, {t}")
        e(f"v_mul_f32 {xi}, {xi}, {er}")
        e(f"v_fma_f32 {xi}, {xr}, {ei}, {xi}")
        e(f"v_mov_b32 {xr}, {t}")
    for Q in range(4):
        e(f"buffer_load_ushort v16, v11, s[36:39], s61 offen offset:{Q*128}")
        e(f"buffer_load_ushort v17, v11, s[40:43], s61 offen offset:{Q*128}")
        e(f"buffer_load_ushort v18, v11, s[44:47], s61 offen offset:{Q*128}")
        e(f"buffer_load_ushort v19, v11, s[48:51], s61 offen offset:{Q*128}")
        e("s_waitcnt vmcnt(0)")
        for r in range(16, 20): e(f"v_lshlrev_b32 v{r}, 16, v{r}")
        e(f"v_mul_f32 v16, {fhex(LOG2E)}, v16")
        e("v_exp_f32 v16, v16")
        e("s_nop 0")
        bf16r("v16")
        e("v_mul_f32 v20, v16, v4")
        e("v_sub_f32 v20, 0, v20")
        e("v_mul_f32 v21, v17, v4")
        e("v_mul_f32 v18, v18, v4")
        e("v_mul_f32 v19, v19, v4")
        cexp("v5", "v22", "v23", "v30", "v31")
        cexp("v6", "v24", "v25", "v30", "v31")
        cexp("v7", "v26", "v27", "v30", "v31")
        cmul("v26", "v27", "v18", "v19", "v30")
        e("v_mov_b32 v28, 1.0"); e("v_mov_b32 v29, 0")
        for i in range(16):
            e(f"ds_write_b32 v8, v26 offset:{AR+i*16}")
            e(f"v_sub_f32 v31, 0, v27")
            e(f"ds_write_b32 v8, v31 offset:{AI+i*16}")
            e(f"ds_write_b32 v8, v28 offset:{BR+i*16}")
            e(f"ds_write_b32 v8, v29 offset:{BI+i*16}")
            if i < 15:
                cmul("v26", "v27", "v24", "v25", "v30")
                cmul("v28", "v29", "v22", "v23", "v30")
        e("s_waitcnt lgkmcnt(0)")
        for T in range(4):
            e(f"ds_read_b128 v[32:35], v10 offset:{AR+T*1088}")
            e(f"ds_read_b128 v[36:39], v10 offset:{AI+T*1088}")
            e(f"ds_read_b128 v[40:43], v10 offset:{BR+T*1088}")
            e(f"ds_read_b128 v[44:47], v10 offset:{BI+T*1088}")
            e("s_waitcnt lgkmcnt(0)")
            for tt in range(4):
                e(f"v_mfma_f32_16x16x4_f32 v[12:15], v{32+tt}, v{40+tt}, v[12:15]")
                e(f"v_mfma_f32_16x16x4_f32 v[12:15], v{36+tt}, v{44+tt}, v[12:15]")
    nop(12)
    e("v_lshrrev_b32 v16, 4, v1")
    e("v_lshlrev_b32 v16, 6, v16")
    e("v_and_b32 v17, 15, v1")
    e("v_add_u32 v16, v16, v17")
    e("v_lshlrev_b32 v17, 8, v2")
    e("v_add_u32 v16, v16, v17")
    e("v_lshlrev_b32 v16, 2, v16")
    e("s_lshl_b32 s61, s2, 12")
    for r in range(4):
        e(f"v_add_f32 v{12+r}, v{12+r}, v{12+r}")
    for r in range(4):
        e(f"buffer_store_dword v{12+r}, v16, s[56:59], s61 offen offset:{r*64}")
    e("s_endpgm")

    lab("P_LN")
    srd(36, P_U, L*D*2); srd(40, P_WS, L*D*2, WS_XN); srd(44, P_WS, L*D*2, WS_XNT)
    e(f"s_sub_u32 s60, s2, {N_KG}")
    e("v_lshrrev_b32 v1, 3, v0")
    e("v_and_b32 v2, 7, v0")
    e("s_lshl_b32 s61, s60, 5")
    e("v_add_u32 v3, s61, v1")
    e("v_mul_u32_u24 v4, 896, v3")
    e("v_lshlrev_b32 v5, 4, v2")
    e("v_add_u32 v4, v4, v5")
    for i in range(7):
        e(f"buffer_load_dwordx4 v[{8+4*i}:{11+4*i}], v4, s[36:39], 0 offen offset:{i*128}")
    e("s_waitcnt vmcnt(0)")
    for i in range(28):
        e(f"v_lshlrev_b32 v{40+2*i}, 16, v{8+i}")
        e(f"v_and_b32 v{41+2*i}, 0xffff0000, v{8+i}")
    e("v_mov_b32 v6, 0")
    for i in range(56): e(f"v_add_f32 v6, v6, v{40+i}")
    def red8(v):
        for x in (1, 2, 4):
            e(f"ds_swizzle_b32 v7, {v} offset:{hex((x<<10)|0x1f)}")
            e("s_waitcnt lgkmcnt(0)")
            e(f"v_add_f32 {v}, {v}, v7")
    red8("v6")
    e(f"v_mul_f32 v6, {fhex(1.0/448)}, v6")
    e("v_mov_b32 v36, 0")
    for i in range(56):
        e(f"v_sub_f32 v37, v{40+i}, v6")
        e("v_fmac_f32 v36, v37, v37")
    red8("v36")
    e(f"v_mul_f32 v36, {fhex(1.0/448)}, v36")
    bf16r("v6"); bf16r("v36")
    e(f"v_add_f32 v36, {fhex(1e-5)}, v36")
    bf16r("v36")
    e("v_sqrt_f32 v36, v36")
    e("s_nop 0")
    bf16r("v36")
    e("v_rcp_f32 v37, v36")
    e("v_lshrrev_b32 v38, 5, v3")
    e("v_mul_u32_u24 v38, 28672, v38")
    e("v_and_b32 v39, 31, v3")
    e("v_lshlrev_b32 v39, 4, v39")
    e("v_add_u32 v38, v38, v39")
    e("v_lshrrev_b32 v39, 1, v2")
    e("v_lshlrev_b32 v39, 10, v39")
    e("v_add_u32 v38, v38, v39")
    e("v_and_b32 v39, 1, v2")
    e("v_lshlrev_b32 v39, 9, v39")
    e("v_add_u32 v38, v38, v39")
    e("v_mul_u32_u24 v39, 912, v1")
    e("v_add_u32 v39, v39, v5")
    for i in range(7):
        for j in range(4):
            a, b = 40 + 8*i + 2*j, 41 + 8*i + 2*j
            for r in (a, b):
                e(f"v_sub_f32 v{r}, v{r}, v6")
            e(f"v_cvt_pk_bf16_f32 v8, v{a}, v{b}")
            e(f"v_lshlrev_b32 v{a}, 16, v8")
            e(f"v_and_b32 v{b}, 0xffff0000, v8")
            for r in (a, b):
                e(f"v_mul_f32 v9, v{r}, v37")
                e(f"v_fma_f32 v10, -v9, v36, v{r}")
                e(f"v_fma_f32 v{r}, v10, v37, v9")
            e(f"v_cvt_pk_bf16_f32 v{12+j}, v{a}, v{b}")
            e(f"v_lshlrev_b32 v{a}, 16, v{12+j}")
            e(f"v_and_b32 v{b}, 0xffff0000, v{12+j}")
            e(f"v_cvt_pkrtz_f16_f32 v{16+j}, v{a}, v{b}")
        e(f"buffer_store_dwordx4 v[12:15], v38, s[40:43], 0 offen offset:0" if i == 0 else f"buffer_store_dwordx4 v[12:15], v38, s[40:43], s62 offen")
        e(f"ds_write_b128 v39, v[16:19] offset:{i*128}")
        e(f"s_mov_b32 s62, {(i+1)*4096}")
        nop(2)
    e("s_waitcnt lgkmcnt(0)")
    e("s_barrier")
    for half in range(2):
        if half == 1:
            e("v_cmp_gt_u32 vcc, 192, v0")
            e("s_and_saveexec_b64 s[64:65], vcc")
            e("s_cbranch_execz P_LN_DONE")
        e(f"v_add_u32 v1, {half*256}, v0")
        e("v_lshlrev_b32 v2, 1, v1")
        for r in range(32):
            e(f"ds_read_u16 v{40+r}, v2 offset:{r*912}")
        e("v_lshlrev_b32 v3, 12, v1")
        e("s_lshl_b32 s63, s60, 6")
        e("s_waitcnt lgkmcnt(0)")
        for r in range(16):
            e(f"v_lshl_or_b32 v{8+r}, v{41+2*r}, 16, v{40+2*r}")
        for q in range(4):
            e(f"buffer_store_dwordx4 v[{8+4*q}:{11+4*q}], v3, s[44:47], s63 offen offset:{q*16}")
    lab("P_LN_DONE")
    e("s_endpgm")

    lab("P_T1")
    srd(36, P_W1, D*F*2); srd(40, P_WS, D*F*2, WS_W1)
    e(f"s_sub_u32 s60, s2, {N_KG+N_LN}")
    e("s_mul_hi_u32 s61, s60, 0x24924925")
    e("s_mul_i32 s62, s61, 7")
    e("s_sub_u32 s62, s60, s62")
    e("s_lshl_b32 s62, s62, 8")
    e("v_add_u32 v1, s62, v0")
    e("v_lshlrev_b32 v2, 1, v1")
    e(f"s_mul_i32 s63, s61, {8*F*2}")
    for i in range(8):
        e(f"s_add_u32 s64, s63, {i*F*2}")
        e(f"buffer_load_ushort v{16+i}, v2, s[36:39], s64 offen")
    e("v_lshrrev_b32 v3, 5, v1")
    e("v_mul_u32_u24 v3, 28672, v3")
    e("v_and_b32 v4, 31, v1")
    e("v_lshlrev_b32 v4, 4, v4")
    e("v_add_u32 v3, v3, v4")
    e("s_lshr_b32 s64, s61, 1")
    e("s_lshl_b32 s64, s64, 10")
    e("s_and_b32 s65, s61, 1")
    e("s_lshl_b32 s65, s65, 9")
    e("s_add_u32 s64, s64, s65")
    e("s_waitcnt vmcnt(0)")
    for r in range(4): e(f"v_lshl_or_b32 v{8+r}, v{17+2*r}, 16, v{16+2*r}")
    e("buffer_store_dwordx4 v[8:11], v3, s[40:43], s64 offen")
    e("s_endpgm")
    lab("P_T2")
    srd(36, P_W2, D*F*2); srd(40, P_WS, D*F*2, WS_W2)
    e(f"s_sub_u32 s60, s2, {N_KG+N_LN+N_T1}")
    e("v_lshrrev_b32 v1, 6, v0")
    e("s_nop 0")
    e("v_readfirstlane_b32 s61, v1")
    e("s_lshl_b32 s60, s60, 2")
    e("s_add_u32 s60, s60, s61")
    e("s_mul_hi_u32 s61, s60, 0x24924925")
    e("s_mul_i32 s62, s61, 7")
    e("s_sub_u32 s62, s60, s62")
    e("s_lshl_b32 s62, s62, 6")
    e("v_and_b32 v1, 63, v0")
    e("v_add_u32 v1, s62, v1")
    e("v_lshlrev_b32 v2, 1, v1")
    e(f"s_mul_i32 s63, s61, {8*D*2}")
    for i in range(8):
        e(f"s_add_u32 s64, s63, {i*D*2}")
        e(f"buffer_load_ushort v{16+i}, v2, s[36:39], s64 offen")
    e("v_lshrrev_b32 v3, 5, v1")
    e("v_mul_u32_u24 v3, 114688, v3")
    e("v_and_b32 v4, 31, v1")
    e("v_lshlrev_b32 v4, 4, v4")
    e("v_add_u32 v3, v3, v4")
    e("s_lshr_b32 s64, s61, 1")
    e("s_lshl_b32 s64, s64, 10")
    e("s_and_b32 s65, s61, 1")
    e("s_lshl_b32 s65, s65, 9")
    e("s_add_u32 s64, s64, s65")
    e("s_waitcnt vmcnt(0)")
    for r in range(4): e(f"v_lshl_or_b32 v{8+r}, v{17+2*r}, 16, v{16+2*r}")
    e("buffer_store_dwordx4 v[8:11], v3, s[40:43], s64 offen")
    e("s_endpgm")

N_CV, N_G1 = 112, 224
CPY = 4224; XOFF = 4*CPY; WVLDS = XOFF + 7680
def gemm_loop(nk, a_srd, b_srd, va, vb, depth=4):
    base = 128
    def issue(kb):
        sl = base + 16*(kb % depth)
        e(f"s_mov_b32 s70, {kb*1024}")
        e(f"buffer_load_dwordx4 v[{sl}:{sl+3}], {va[0]}, {a_srd}, s70 offen")
        e(f"buffer_load_dwordx4 v[{sl+4}:{sl+7}], {va[1]}, {a_srd}, s70 offen")
        e(f"buffer_load_dwordx4 v[{sl+8}:{sl+11}], {vb[0]}, {b_srd}, s70 offen")
        e(f"buffer_load_dwordx4 v[{sl+12}:{sl+15}], {vb[1]}, {b_srd}, s70 offen")
    for r in range(64, 128): e(f"v_mov_b32 v{r}, 0")
    for kb in range(min(depth-1, nk)): issue(kb)
    for kb in range(nk):
        if kb + depth - 1 < nk:
            issue(kb + depth - 1); e(f"s_waitcnt vmcnt({4*(depth-1)})")
        else:
            e(f"s_waitcnt vmcnt({4*(nk-1-kb)})")
        sl = base + 16*(kb % depth)
        for i in range(2):
            for j in range(2):
                a = 64 + 16*(2*i+j)
                e(f"v_mfma_f32_32x32x16_bf16 v[{a}:{a+15}], v[{sl+4*i}:{sl+4*i+3}], v[{sl+8+4*j}:{sl+8+4*j+3}], v[{a}:{a+15}]")
    nop(16)

def kernel2():
    out.append(".globl mid_kernel"); out.append(".p2align 8"); out.append(".type mid_kernel,@function")
    lab("mid_kernel")
    load_ptrs()
    e(f"s_cmp_lt_u32 s2, {N_CV}")
    e("s_cbranch_scc1 M_CONV")
    e(f"s_cmp_lt_u32 s2, {N_CV+N_G1}")
    e("s_cbranch_scc1 M_G1")
    e("s_endpgm")
    lab("M_CONV")
    srd(36, P_WS, D*4096, WS_KC); srd(40, P_WS, L*D*2, WS_XNT); srd(44, P_WS, L*D*2, WS_ST); srd(48, P_DSK, D*2)
    e("v_and_b32 v1, 63, v0"); e("v_lshrrev_b32 v2, 6, v0"); e("s_nop 0")
    e("v_readfirstlane_b32 s60, v2")
    e("s_lshl_b32 s61, s2, 2"); e("s_add_u32 s61, s61, s60")
    e(f"s_mul_i32 s62, s60, {WVLDS}")
    e("s_lshl_b32 s63, s61, 12")
    e("s_lshl_b32 s64, s61, 1")
    e("v_mov_b32 v3, 0")
    e("buffer_load_ushort v60, v3, s[48:51], s64 offen")
    e("v_lshlrev_b32 v3, 4, v1")
    for t in range(4): e(f"buffer_load_dwordx4 v[{8+4*t}:{11+4*t}], v3, s[40:43], s63 offen offset:{t*1024}")
    for r in range(4,8): e(f"v_mov_b32 v{r}, 0")
    e(f"v_add_u32 v30, s62, v3")
    for t in range(2): e(f"ds_write_b128 v30, v[4:7] offset:{XOFF+t*1024}")
    e("v_cmp_gt_u32 vcc, 32, v1"); e("s_and_saveexec_b64 s[66:67], vcc")
    e(f"ds_write_b128 v30, v[4:7] offset:{XOFF+2048}")
    e("s_mov_b64 exec, s[66:67]")
    e("v_lshrrev_b32 v31, 2, v1"); e("v_mul_u32_u24 v31, 80, v31"); e("v_and_b32 v32, 3, v1"); e("v_lshlrev_b32 v32, 4, v32")
    e("v_add_u32 v31, v31, v32"); e("v_add_u32 v31, s62, v31")
    e("s_waitcnt vmcnt(0)")
    for t in range(4): e(f"ds_write_b128 v31, v[{8+4*t}:{11+4*t}] offset:{XOFF+2560+t*1280}")
    e("v_lshlrev_b32 v33, 1, v1"); e("v_add_u32 v33, s62, v33")
    for t in range(33):
        e(f"v_sub_u32 v8, {2047-64*t}, v1")
        e("v_max_i32 v9, 1, v8")
        e("v_ffbh_u32 v10, v9")
        e("v_sub_u32 v10, 24, v10"); e("v_max_i32 v10, 0, v10")
        e("v_lshlrev_b32 v11, v10, 64"); e("v_lshlrev_b32 v11, 1, v11"); e("v_cmp_eq_u32 vcc, 0, v10"); e("s_nop 1")
        e("v_cndmask_b32 v11, v11, 0, vcc")
        e("v_sub_u32 v12, v8, v11")
        e("v_lshrrev_b32 v13, v10, v12"); e("v_and_b32 v13, 1, v13")
        e("v_lshlrev_b32 v14, v10, 1"); e("v_lshrrev_b32 v14, 1, v14")
        e("v_add3_u32 v13, v13, v14, v12"); e("v_add_u32 v13, -1, v13"); e("v_lshrrev_b32 v13, v10, v13")
        e("v_cndmask_b32 v13, v13, v12, vcc")
        e("v_lshlrev_b32 v10, 8, v10"); e("v_add_u32 v13, v13, v10"); e("v_lshlrev_b32 v13, 2, v13")
        e("v_cmp_gt_i32 vcc, 0, v8"); e("s_nop 1")
        e("v_cndmask_b32 v13, v13, -4, vcc")
        e(f"buffer_load_dword v{64+t}, v13, s[36:39], s63 offen")
    e("s_waitcnt vmcnt(0)")
    for t in range(33):
        e(f"v_cvt_f16_f32 v{64+t}, v{64+t}")
        for ph in range(4):
            off = ph*CPY + t*128 - ph*2
            if off < 0:
                e(f"v_cmp_le_u32 vcc, {ph}, v1"); e("s_and_saveexec_b64 s[66:67], vcc")
                e(f"v_add_u32 v34, {off}, v33"); e(f"ds_write_b16 v34, v{64+t}"); e("s_mov_b64 exec, s[66:67]")
            else:
                e(f"ds_write_b16 v33, v{64+t} offset:{off}")
    e("v_and_b32 v8, 31, v1"); e("v_lshrrev_b32 v9, 5, v1")
    e("v_lshlrev_b32 v10, 3, v9"); e("v_sub_u32 v10, v10, v8"); e("v_add_u32 v10, 31, v10")
    e("v_sub_u32 v11, 3, v8"); e("v_and_b32 v11, 3, v11")
    e("v_sub_u32 v10, v10, v11"); e("v_lshlrev_b32 v10, 1, v10")
    e(f"v_mul_u32_u24 v11, {CPY}, v11"); e("v_add_u32 v10, v10, v11"); e("v_add_u32 v10, s62, v10")
    e("v_mul_u32_u24 v12, 80, v8"); e("v_lshlrev_b32 v13, 4, v9"); e("v_add_u32 v12, v12, v13"); e("v_add_u32 v12, s62, v12")
    for r in range(96, 128): e(f"v_mov_b32 v{r}, 0")
    e("s_waitcnt lgkmcnt(0)")
    for dl in range(64):
        for ks in range(2):
            ao = (63-dl)*64 + 32*ks
            e(f"ds_read_b64 v[16:17], v10 offset:{ao}"); e(f"ds_read_b64 v[18:19], v10 offset:{ao+8}")
            e(f"ds_read_b128 v[24:27], v12 offset:{XOFF+(64-dl)*80+32*ks}")
            if dl < 32: e(f"ds_read_b128 v[20:23], v12 offset:{XOFF+(32-dl)*80+32*ks}")
            e("s_waitcnt lgkmcnt(0)")
            e("v_mfma_f32_32x32x16_f16 v[112:127], v[16:19], v[24:27], v[112:127]")
            if dl < 32: e("v_mfma_f32_32x32x16_f16 v[96:111], v[16:19], v[20:23], v[96:111]")
    nop(16)
    e("v_lshlrev_b32 v60, 16, v60")
    e("v_lshlrev_b32 v14, 6, v8"); e("v_lshlrev_b32 v15, 3, v9"); e("v_add_u32 v14, v14, v15")
    e("v_mul_u32_u24 v12, 80, v8"); e("v_add_u32 v12, v12, v15"); e("v_add_u32 v12, s62, v12")
    for ab in range(2):
        for jg in range(4):
            e(f"ds_read_b64 v[16:17], v12 offset:{XOFF+(32*ab+32)*80+16*jg}")
            e("s_waitcnt lgkmcnt(0)")
            e("v_cvt_f32_f16 v20, v16"); e("v_lshrrev_b32 v16, 16, v16"); e("v_cvt_f32_f16 v21, v16")
            e("v_cvt_f32_f16 v22, v17"); e("v_lshrrev_b32 v17, 16, v17"); e("v_cvt_f32_f16 v23, v17")
            for r in range(4):
                a = 96+16*ab+4*jg+r
                e(f"v_mul_f32 v{20+r}, v{20+r}, v60"); bf16r(f"v{20+r}"); bf16r(f"v{a}")
                e(f"v_add_f32 v{20+r}, v{20+r}, v{a}")
            e("v_cvt_pk_bf16_f32 v24, v20, v21"); e("v_cvt_pk_bf16_f32 v25, v22, v23")
            e(f"buffer_store_dwordx2 v[24:25], v14, s[44:47], s63 offen offset:{ab*2048+16*jg}")
    e("s_endpgm")

    lab("M_G1")
    srd(36, P_WS, D*F*2, WS_W1); srd(40, P_WS, L*D*2, WS_XN); srd(44, P_WS, L*F*2, WS_H); srd(48, P_B1, F*2)
    e(f"s_sub_u32 s60, s2, {N_CV}")
    e("s_mul_hi_u32 s61, s60, 0x12492493")
    e("s_mul_i32 s62, s61, 14"); e("s_sub_u32 s62, s60, s62")
    e("v_and_b32 v1, 63, v0"); e("v_lshrrev_b32 v2, 6, v0"); e("s_nop 0"); e("v_readfirstlane_b32 s63, v2")
    e("s_and_b32 s64, s63, 1"); e("s_lshr_b32 s65, s63, 1")
    e("s_lshl_b32 s66, s62, 2"); e("s_lshl_b32 s64, s64, 1"); e("s_add_u32 s66, s66, s64")
    e("s_lshl_b32 s67, s61, 2"); e("s_lshl_b32 s65, s65, 1"); e("s_add_u32 s67, s67, s65")
    e("v_lshlrev_b32 v3, 4, v1")
    e("s_mul_i32 s68, s66, 28672"); e("v_add_u32 v4, s68, v3"); e("v_add_u32 v5, 28672, v4")
    e("s_mul_i32 s68, s67, 28672"); e("v_add_u32 v6, s68, v3"); e("v_add_u32 v7, 28672, v6")
    gemm_loop(28, "s[36:39]", "s[40:43]", ("v4","v5"), ("v6","v7"))
    e("v_lshrrev_b32 v8, 5, v1"); e("v_lshlrev_b32 v8, 3, v8")
    e("s_lshl_b32 s68, s66, 6")
    for i in range(2):
        for jg in range(4):
            e(f"buffer_load_dwordx2 v[{128+8*i+2*jg}:{129+8*i+2*jg}], v8, s[48:51], s68 offen offset:{i*64+16*jg}")
    e("s_waitcnt vmcnt(0)")
    for i in range(2):
        for j in range(2):
            a0 = 64+16*(2*i+j)
            for jg in range(4):
                bb = 128+8*i+2*jg
                e(f"v_lshlrev_b32 v10, 16, v{bb}"); e(f"v_and_b32 v11, 0xffff0000, v{bb}")
                e(f"v_lshlrev_b32 v12, 16, v{bb+1}"); e(f"v_and_b32 v13, 0xffff0000, v{bb+1}")
                for r in range(4):
                    a = a0+4*jg+r
                    bf16r(f"v{a}"); e(f"v_add_f32 v{a}, v{a}, v{10+r}"); bf16r(f"v{a}")
                    e(f"v_max_f32 v{a}, 0, v{a}"); e(f"v_mul_f32 v{a}, v{a}, v{a}")
                e(f"v_cvt_pk_bf16_f32 v{16+2*jg}, v{a0+4*jg}, v{a0+4*jg+1}")
                e(f"v_cvt_pk_bf16_f32 v{17+2*jg}, v{a0+4*jg+2}, v{a0+4*jg+3}")
            nop(2)
            for hh in range(2):
                p = 16+4*hh
                e(f"v_permlane32_swap_b32 v{p}, v{p+2}"); e(f"v_permlane32_swap_b32 v{p+1}, v{p+3}")
            e(f"s_add_u32 s69, s67, {j}"); e("s_mul_i32 s69, s69, 112")
            e(f"s_lshl_b32 s70, s66, 1"); e("s_add_u32 s69, s69, s70"); e(f"s_add_u32 s69, s69, {2*i}"); e("s_lshl_b32 s69, s69, 10")
            e("buffer_store_dwordx4 v[16:19], v3, s[44:47], s69 offen")
            e("buffer_store_dwordx4 v[20:23], v3, s[44:47], s69 offen offset:1024")
            nop(2)
    e("s_endpgm")

N_G2 = 224
def kernel3():
    out.append(".globl fin_kernel"); out.append(".p2align 8"); out.append(".type fin_kernel,@function")
    lab("fin_kernel")
    load_ptrs()
    e(f"s_cmp_lt_u32 s2, {N_G2}"); e("s_cbranch_scc1 F_GO"); e("s_endpgm")
    lab("F_GO")
    srd(36, P_WS, D*F*2, WS_W2); srd(40, P_WS, L*F*2, WS_H); srd(44, P_WS, L*D*2, WS_ST); srd(48, P_B2, D*2)
    srd(52, P_U, L*D*2); srd(56, P_OUT, L*D*2)
    e("s_mul_hi_u32 s61, s2, 0x24924925"); e("s_mul_i32 s62, s61, 7"); e("s_sub_u32 s62, s2, s62")
    e("v_and_b32 v1, 63, v0"); e("v_lshrrev_b32 v2, 6, v0"); e("s_nop 0"); e("v_readfirstlane_b32 s63, v2")
    e("v_lshlrev_b32 v3, 4, v1")
    e("s_mul_i32 s64, s63, 28672")
    e("s_mul_i32 s68, s62, 229376"); e("s_add_u32 s68, s68, s64"); e("v_add_u32 v4, s68, v3"); e("v_add_u32 v5, 114688, v4")
    e("s_mul_i32 s68, s61, 229376"); e("s_add_u32 s68, s68, s64"); e("v_add_u32 v6, s68, v3"); e("v_add_u32 v7, 114688, v6")
    gemm_loop(28, "s[36:39]", "s[40:43]", ("v4","v5"), ("v6","v7"))
    e("v_lshlrev_b32 v8, 4, v1")
    for t in range(4):
        e(f"s_lshl_b32 s70, s63, 12"); e(f"s_add_u32 s70, s70, {t*16384}"); e("v_add_u32 v9, s70, v8")
        for q in range(4): e(f"ds_write_b128 v9, v[{64+16*t+4*q}:{67+16*t+4*q}] offset:{q*1024}")
    e("s_waitcnt lgkmcnt(0)"); e("s_barrier")
    e("s_lshl_b32 s70, s63, 14"); e("v_add_u32 v9, s70, v8")
    for w in range(4):
        for q in range(4): e(f"ds_read_b128 v[{128+16*w+4*q}:{131+16*w+4*q}], v9 offset:{w*4096+q*1024}")
    e("s_waitcnt lgkmcnt(0)")
    for r in range(16):
        e(f"v_add_f32 v{64+r}, v{128+r}, v{144+r}"); e(f"v_add_f32 v{80+r}, v{160+r}, v{176+r}"); e(f"v_add_f32 v{64+r}, v{64+r}, v{80+r}")
    e("s_lshr_b32 s64, s63, 1"); e("s_and_b32 s65, s63, 1")
    e("s_lshl_b32 s66, s62, 6"); e("s_lshl_b32 s64, s64, 5"); e("s_add_u32 s66, s66, s64")
    e("s_lshl_b32 s67, s61, 6"); e("s_lshl_b32 s65, s65, 5"); e("s_add_u32 s67, s67, s65")
    e("v_and_b32 v10, 31, v1"); e("v_lshrrev_b32 v11, 5, v1")
    e("v_add_u32 v12, s67, v10")
    e("v_lshlrev_b32 v13, 2, v11"); e("v_add_u32 v13, s66, v13")
    e("v_mul_u32_u24 v14, 896, v12"); e("v_lshlrev_b32 v15, 1, v13"); e("v_add_u32 v14, v14, v15")
    e("v_lshlrev_b32 v16, 12, v13"); e("v_lshlrev_b32 v17, 1, v12"); e("v_add_u32 v16, v16, v17")
    for jg in range(4):
        e(f"buffer_load_dwordx2 v[{128+2*jg}:{129+2*jg}], v14, s[52:55], 0 offen offset:{16*jg}")
        e(f"buffer_load_dwordx2 v[{136+2*jg}:{137+2*jg}], v15, s[48:51], 0 offen offset:{16*jg}")
        for r in range(4):
            e(f"s_mov_b32 s70, {(8*jg+r)*4096}")
            e(f"buffer_load_ushort v{144+4*jg+r}, v16, s[44:47], s70 offen")
    e("s_waitcnt vmcnt(0)")
    for jg in range(4):
        for (src, dst) in ((128, 20), (136, 24)):
            e(f"v_lshlrev_b32 v{dst}, 16, v{src+2*jg}"); e(f"v_and_b32 v{dst+1}, 0xffff0000, v{src+2*jg}")
            e(f"v_lshlrev_b32 v{dst+2}, 16, v{src+1+2*jg}"); e(f"v_and_b32 v{dst+3}, 0xffff0000, v{src+1+2*jg}")
        for r in range(4):
            a = 64+4*jg+r
            bf16r(f"v{a}"); e(f"v_add_f32 v{a}, v{a}, v{24+r}"); bf16r(f"v{a}")
            e(f"v_mul_f32 v28, {fhex(-LOG2E)}, v{a}"); e("v_exp_f32 v28, v28"); e("s_nop 0")
            e("v_add_f32 v28, 1.0, v28"); e("v_rcp_f32 v28, v28"); e("s_nop 0")
            e(f"v_mul_f32 v{a}, v{a}, v28"); bf16r(f"v{a}")
            e(f"v_lshlrev_b32 v29, 16, v{144+4*jg+r}"); e(f"v_mul_f32 v{a}, v{a}, v29"); bf16r(f"v{a}")
            e(f"v_add_f32 v{a}, v{a}, v{20+r}")
        e(f"v_cvt_pk_bf16_f32 v{30+2*jg}, v{64+4*jg}, v{65+4*jg}"); e(f"v_cvt_pk_bf16_f32 v{31+2*jg}, v{66+4*jg}, v{67+4*jg}")
        e(f"buffer_store_dwordx2 v[{30+2*jg}:{31+2*jg}], v14, s[56:59], 0 offen offset:{16*jg}")
    e("s_endpgm")

def descriptor(name, vgpr=128):
    out.append(f""".section .rodata,"a"
.p2align 6
.amdhsa_kernel {name}
  .amdhsa_next_free_vgpr {vgpr}
  .amdhsa_next_free_sgpr 102
  .amdhsa_accum_offset {vgpr}
  .amdhsa_group_segment_fixed_size 0
  .amdhsa_kernarg_size 120
  .amdhsa_user_sgpr_count 2
  .amdhsa_user_sgpr_kernarg_segment_ptr 1
  .amdhsa_system_sgpr_workgroup_id_x 1
.end_amdhsa_kernel
.text""")

def main(path):
    hdr = [f"; @launch kernel=prep_kernel grid=({N_KG+N_LN+N_T1+N_T2},1,1) block=(256,1,1) lds=69632"]
    out.append('.amdgcn_target "amdgcn-amd-amdhsa--gfx950"')
    out.append(".text")
    kernel1(); descriptor("prep_kernel")
    kernel2(); descriptor("mid_kernel", 192)
    kernel3(); descriptor("fin_kernel", 192)
    hdr.append(f"; @launch kernel=mid_kernel grid=({N_CV+N_G1},1,1) block=(256,1,1) lds={4*WVLDS}")
    hdr.append(f"; @launch kernel=fin_kernel grid=({N_G2},1,1) block=(256,1,1) lds=65536")
    open(path, "w").write("\n".join(hdr + out) + "\n")
if __name__ == "__main__":
    main(sys.argv[1] if len(sys.argv) > 1 else f"cdna_kernels/{NAME}.s")
```

```python
import sys, math
NAME = "recurrent_scan__ssm_conv_s4d__dense_activation_squared_relu__prompt"
L, D, NS, F = 2048, 448, 256, 1792
WS_XN  = 0x0000000
WS_XNT = 0x0200000
WS_W1  = 0x0400000
WS_W2  = 0x0600000
WS_KC  = 0x0800000
WS_H   = 0x0A00000
WS_ST  = 0x1200000
WS_SIZE = 0x1400000

out = []
def e(s): out.append("    " + s)
def lab(s): out.append(s + ":")
def nop(n):
    while n > 0:
        k = min(n, 16); e(f"s_nop {k-1}"); n -= k

LOG2E = 1.4426950408889634
INV2PI = 0.15915494309189535
def fhex(x):
    import struct
    return "0x%08x" % struct.unpack("<I", struct.pack("<f", x))[0]

def srd(sd, sp, nbytes, add=0):
    if add:
        e(f"s_add_u32 s{sd}, s{sp}, {hex(add)}")
        e(f"s_addc_u32 s{sd+1}, s{sp+1}, 0")
    else:
        e(f"s_mov_b32 s{sd}, s{sp}")
        e(f"s_mov_b32 s{sd+1}, s{sp+1}")
    e(f"s_mov_b32 s{sd+2}, {hex(nbytes)}")
    e(f"s_mov_b32 s{sd+3}, 0x00020000")

def load_ptrs():
    e("s_load_dwordx16 s[4:19], s[0:1], 0")
    e("s_load_dwordx8 s[20:27], s[0:1], 64")
    e("s_load_dwordx4 s[28:31], s[0:1], 96")
    e("s_load_dwordx2 s[32:33], s[0:1], 112")
    e("s_waitcnt lgkmcnt(0)")
P_U, P_LOGA, P_AIM, P_CR, P_CI, P_LOGDT, P_DSK, P_BX, P_W1, P_B1, P_W2, P_B2, P_OUT, P_DBG, P_WS = range(4, 34, 2)

def bf16r(v, tmp=None):
    e(f"v_cvt_pk_bf16_f32 {v}, {v}, {v}")
    e(f"v_lshlrev_b32 {v}, 16, {v}")

N_KG, N_LN, N_T1, N_T2 = 448, 64, 392, 392
def kernel1():
    out.append(".globl prep_kernel")
    out.append(".p2align 8")
    out.append(".type prep_kernel,@function")
    lab("prep_kernel")
    load_ptrs()
    e(f"s_cmp_lt_u32 s2, {N_KG}")
    e("s_cbranch_scc1 P_KGEN")
    e(f"s_cmp_lt_u32 s2, {N_KG+N_LN}")
    e("s_cbranch_scc1 P_LN")
    e(f"s_cmp_lt_u32 s2, {N_KG+N_LN+N_T1}")
    e("s_cbranch_scc1 P_T1")
    e(f"s_cmp_lt_u32 s2, {N_KG+N_LN+N_T1+N_T2}")
    e("s_cbranch_scc1 P_T2")
    e("s_endpgm")
    lab("P_KGEN")
    srd(36, P_LOGA, D*NS*2); srd(40, P_AIM, D*NS*2); srd(44, P_CR, D*NS*2); srd(48, P_CI, D*NS*2)
    srd(52, P_LOGDT, D*2); srd(56, P_WS, D*1024*4, WS_KC)
    e("v_and_b32 v1, 63, v0")
    e("v_lshrrev_b32 v2, 6, v0")
    e("s_nop 0")
    e("v_readfirstlane_b32 s60, v2")
    e("v_mov_b32 v3, 0")
    e("s_lshl_b32 s61, s2, 1")
    e("buffer_load_ushort v4, v3, s[52:55], s61 offen")
    e("s_lshl_b32 s62, 1, s60")
    e("s_lshl_b32 s63, 16, s60")
    e("s_lshl_b32 s64, 128, s60")
    e("s_cmp_eq_u32 s60, 0")
    e("s_cselect_b32 s64, 0, s64")
    e("v_cvt_f32_u32 v5, s62")
    e("v_cvt_f32_u32 v6, s63")
    e("v_cvt_f32_u32 v7, s64")
    e("v_lshrrev_b32 v8, 4, v1")
    e("v_mul_u32_u24 v8, 1088, v8")
    e("v_and_b32 v9, 3, v1")
    e("v_mul_u32_u24 v9, 272, v9")
    e("v_add_u32 v8, v8, v9")
    e("v_bfe_u32 v9, v1, 2, 2")
    e("v_lshlrev_b32 v9, 2, v9")
    e("v_add_u32 v8, v8, v9")
    e("v_mul_u32_u24 v9, 17408, v2")
    e("v_add_u32 v8, v8, v9")
    e("v_lshrrev_b32 v10, 4, v1")
    e("v_mul_u32_u24 v10, 272, v10")
    e("v_and_b32 v11, 15, v1")
    e("v_lshlrev_b32 v11, 4, v11")
    e("v_add_u32 v10, v10, v11")
    e("v_add_u32 v10, v10, v9")
    e("s_waitcnt vmcnt(0)")
    e("v_lshlrev_b32 v4, 16, v4")
    e(f"v_mul_f32 v4, {fhex(LOG2E)}, v4")
    e("v_exp_f32 v4, v4")
    e("s_nop 0")
    bf16r("v4")
    for r in range(12, 16): e(f"v_mov_b32 v{r}, 0")
    e("s_lshl_b32 s61, s2, 9")
    e("v_lshlrev_b32 v11, 1, v1")
    AR, AI, BR, BI = 0, 4352, 8704, 13056
    def cexp(tv, dr, di, t1, t2):
        e(f"v_mul_f32 {t1}, v20, {tv}")
        e(f"v_mul_f32 {t1}, {fhex(LOG2E)}, {t1}")
        e(f"v_exp_f32 {t1}, {t1}")
        e(f"v_mul_f32 {t2}, v21, {tv}")
        e(f"v_mul_f32 {t2}, {fhex(INV2PI)}, {t2}")
        e(f"v_fract_f32 {t2}, {t2}")
        e(f"v_cos_f32 {dr}, {t2}")
        e(f"v_sin_f32 {di}, {t2}")
        e("s_nop 0")
        e(f"v_mul_f32 {dr}, {t1}, {dr}")
        e(f"v_mul_f32 {di}, {t1}, {di}")
    def cmul(xr, xi, er, ei, t):
        e(f"v_mul_f32 {t}, {xr}, {er}")
        e(f"v_fma_f32 {t}, -{xi}, {ei}, {t}")
        e(f"v_mul_f32 {xi}, {xi}, {er}")
        e(f"v_fma_f32 {xi}, {xr}, {ei}, {xi}")
        e(f"v_mov_b32 {xr}, {t}")
    for Q in range(4):
        for a in range(4): e(f"buffer_load_ushort v{64+4*Q+a}, v11, s[{36+4*a}:{39+4*a}], s61 offen offset:{Q*128}")
    e("s_waitcnt vmcnt(0)")
    for Q in range(4):
        for r in range(4): e(f"v_lshlrev_b32 v{16+r}, 16, v{64+4*Q+r}")
        e(f"v_mul_f32 v16, {fhex(LOG2E)}, v16")
        e("v_exp_f32 v16, v16")
        e("s_nop 0")
        bf16r("v16")
        e("v_mul_f32 v20, v16, v4")
        e("v_sub_f32 v20, 0, v20")
        e("v_mul_f32 v21, v17, v4")
        e("v_mul_f32 v18, v18, v4")
        e("v_mul_f32 v19, v19, v4")
        cexp("v5", "v22", "v23", "v30", "v31")
        cexp("v6", "v24", "v25", "v30", "v31")
        cexp("v7", "v26", "v27", "v30", "v31")
        cmul("v26", "v27", "v18", "v19", "v30")
        e("v_mov_b32 v28, 1.0"); e("v_mov_b32 v29, 0")
        for i in range(16):
            e(f"ds_write_b32 v8, v26 offset:{AR+i*16}")
            e(f"v_sub_f32 v31, 0, v27")
            e(f"ds_write_b32 v8, v31 offset:{AI+i*16}")
            e(f"ds_write_b32 v8, v28 offset:{BR+i*16}")
            e(f"ds_write_b32 v8, v29 offset:{BI+i*16}")
            if i < 15:
                cmul("v26", "v27", "v24", "v25", "v30")
                cmul("v28", "v29", "v22", "v23", "v30")
        e("s_waitcnt lgkmcnt(0)")
        for T in range(4):
            e(f"ds_read_b128 v[32:35], v10 offset:{AR+T*1088}")
            e(f"ds_read_b128 v[36:39], v10 offset:{AI+T*1088}")
            e(f"ds_read_b128 v[40:43], v10 offset:{BR+T*1088}")
            e(f"ds_read_b128 v[44:47], v10 offset:{BI+T*1088}")
            e("s_waitcnt lgkmcnt(0)")
            for tt in range(4):
                e(f"v_mfma_f32_16x16x4_f32 v[12:15], v{32+tt}, v{40+tt}, v[12:15]")
                e(f"v_mfma_f32_16x16x4_f32 v[12:15], v{36+tt}, v{44+tt}, v[12:15]")
    nop(12)
    e("v_lshrrev_b32 v16, 4, v1")
    e("v_lshlrev_b32 v16, 6, v16")
    e("v_and_b32 v17, 15, v1")
    e("v_add_u32 v16, v16, v17")
    e("v_lshlrev_b32 v17, 8, v2")
    e("v_add_u32 v16, v16, v17")
    e("v_lshlrev_b32 v16, 2, v16")
    e("s_lshl_b32 s61, s2, 12")
    for r in range(4):
        e(f"v_add_f32 v{12+r}, v{12+r}, v{12+r}")
    for r in range(4):
        e(f"buffer_store_dword v{12+r}, v16, s[56:59], s61 offen offset:{r*64}")
    e("s_endpgm")

    lab("P_LN")
    srd(36, P_U, L*D*2); srd(40, P_WS, L*D*2, WS_XN); srd(44, P_WS, L*D*2, WS_XNT)
    e(f"s_sub_u32 s60, s2, {N_KG}")
    e("v_lshrrev_b32 v1, 3, v0")
    e("v_and_b32 v2, 7, v0")
    e("s_lshl_b32 s61, s60, 5")
    e("v_add_u32 v3, s61, v1")
    e("v_mul_u32_u24 v4, 896, v3")
    e("v_lshlrev_b32 v5, 4, v2")
    e("v_add_u32 v4, v4, v5")
    for i in range(7):
        e(f"buffer_load_dwordx4 v[{8+4*i}:{11+4*i}], v4, s[36:39], 0 offen offset:{i*128}")
    e("s_waitcnt vmcnt(0)")
    for i in range(28):
        e(f"v_lshlrev_b32 v{40+2*i}, 16, v{8+i}")
        e(f"v_and_b32 v{41+2*i}, 0xffff0000, v{8+i}")
    e("v_mov_b32 v6, 0")
    for i in range(56): e(f"v_add_f32 v6, v6, v{40+i}")
    def red8(v):
        for x in (1, 2, 4):
            e(f"ds_swizzle_b32 v7, {v} offset:{hex((x<<10)|0x1f)}")
            e("s_waitcnt lgkmcnt(0)")
            e(f"v_add_f32 {v}, {v}, v7")
    red8("v6")
    e(f"v_mul_f32 v6, {fhex(1.0/448)}, v6")
    e("v_mov_b32 v36, 0")
    for i in range(56):
        e(f"v_sub_f32 v37, v{40+i}, v6")
        e("v_fmac_f32 v36, v37, v37")
    red8("v36")
    e(f"v_mul_f32 v36, {fhex(1.0/448)}, v36")
    bf16r("v6"); bf16r("v36")
    e(f"v_add_f32 v36, {fhex(1e-5)}, v36")
    bf16r("v36")
    e("v_sqrt_f32 v36, v36")
    e("s_nop 0")
    bf16r("v36")
    e("v_rcp_f32 v37, v36")
    e("v_lshrrev_b32 v38, 5, v3")
    e("v_mul_u32_u24 v38, 28672, v38")
    e("v_and_b32 v39, 31, v3")
    e("v_lshlrev_b32 v39, 4, v39")
    e("v_add_u32 v38, v38, v39")
    e("v_lshrrev_b32 v39, 1, v2")
    e("v_lshlrev_b32 v39, 10, v39")
    e("v_add_u32 v38, v38, v39")
    e("v_and_b32 v39, 1, v2")
    e("v_lshlrev_b32 v39, 9, v39")
    e("v_add_u32 v38, v38, v39")
    e("v_mul_u32_u24 v39, 912, v1")
    e("v_add_u32 v39, v39, v5")
    for i in range(7):
        for j in range(4):
            a, b = 40 + 8*i + 2*j, 41 + 8*i + 2*j
            for r in (a, b):
                e(f"v_sub_f32 v{r}, v{r}, v6")
            e(f"v_cvt_pk_bf16_f32 v8, v{a}, v{b}")
            e(f"v_lshlrev_b32 v{a}, 16, v8")
            e(f"v_and_b32 v{b}, 0xffff0000, v8")
            for r in (a, b):
                e(f"v_mul_f32 v9, v{r}, v37")
                e(f"v_fma_f32 v10, -v9, v36, v{r}")
                e(f"v_fma_f32 v{r}, v10, v37, v9")
            e(f"v_cvt_pk_bf16_f32 v{12+j}, v{a}, v{b}")
            e(f"v_lshlrev_b32 v{a}, 16, v{12+j}")
            e(f"v_and_b32 v{b}, 0xffff0000, v{12+j}")
            e(f"v_cvt_pkrtz_f16_f32 v{16+j}, v{a}, v{b}")
        e(f"buffer_store_dwordx4 v[12:15], v38, s[40:43], 0 offen offset:0" if i == 0 else f"buffer_store_dwordx4 v[12:15], v38, s[40:43], s62 offen")
        e(f"ds_write_b128 v39, v[16:19] offset:{i*128}")
        e(f"s_mov_b32 s62, {(i+1)*4096}")
        nop(2)
    e("s_waitcnt lgkmcnt(0)")
    e("s_barrier")
    for half in range(2):
        if half == 1:
            e("v_cmp_gt_u32 vcc, 192, v0")
            e("s_and_saveexec_b64 s[64:65], vcc")
            e("s_cbranch_execz P_LN_DONE")
        e(f"v_add_u32 v1, {half*256}, v0")
        e("v_lshlrev_b32 v2, 1, v1")
        for r in range(32):
            e(f"ds_read_u16 v{40+r}, v2 offset:{r*912}")
        e("v_lshlrev_b32 v3, 12, v1")
        e("s_lshl_b32 s63, s60, 6")
        e("s_waitcnt lgkmcnt(0)")
        for r in range(16):
            e(f"v_lshl_or_b32 v{8+r}, v{41+2*r}, 16, v{40+2*r}")
        for q in range(4):
            e(f"buffer_store_dwordx4 v[{8+4*q}:{11+4*q}], v3, s[44:47], s63 offen offset:{q*16}")
    lab("P_LN_DONE")
    e("s_endpgm")

    lab("P_T1")
    srd(36, P_W1, D*F*2); srd(40, P_WS, D*F*2, WS_W1)
    e(f"s_sub_u32 s60, s2, {N_KG+N_LN}")
    e("s_mul_hi_u32 s61, s60, 0x24924925")
    e("s_mul_i32 s62, s61, 7")
    e("s_sub_u32 s62, s60, s62")
    e("s_lshl_b32 s62, s62, 8")
    e("v_add_u32 v1, s62, v0")
    e("v_lshlrev_b32 v2, 1, v1")
    e(f"s_mul_i32 s63, s61, {8*F*2}")
    for i in range(8):
        e(f"s_add_u32 s64, s63, {i*F*2}")
        e(f"buffer_load_ushort v{16+i}, v2, s[36:39], s64 offen")
    e("v_lshrrev_b32 v3, 5, v1")
    e("v_mul_u32_u24 v3, 28672, v3")
    e("v_and_b32 v4, 31, v1")
    e("v_lshlrev_b32 v4, 4, v4")
    e("v_add_u32 v3, v3, v4")
    e("s_lshr_b32 s64, s61, 1")
    e("s_lshl_b32 s64, s64, 10")
    e("s_and_b32 s65, s61, 1")
    e("s_lshl_b32 s65, s65, 9")
    e("s_add_u32 s64, s64, s65")
    e("s_waitcnt vmcnt(0)")
    for r in range(4): e(f"v_lshl_or_b32 v{8+r}, v{17+2*r}, 16, v{16+2*r}")
    e("buffer_store_dwordx4 v[8:11], v3, s[40:43], s64 offen")
    e("s_endpgm")
    lab("P_T2")
    srd(36, P_W2, D*F*2); srd(40, P_WS, D*F*2, WS_W2)
    e(f"s_sub_u32 s60, s2, {N_KG+N_LN+N_T1}")
    e("v_lshrrev_b32 v1, 6, v0")
    e("s_nop 0")
    e("v_readfirstlane_b32 s61, v1")
    e("s_lshl_b32 s60, s60, 2")
    e("s_add_u32 s60, s60, s61")
    e("s_mul_hi_u32 s61, s60, 0x24924925")
    e("s_mul_i32 s62, s61, 7")
    e("s_sub_u32 s62, s60, s62")
    e("s_lshl_b32 s62, s62, 6")
    e("v_and_b32 v1, 63, v0")
    e("v_add_u32 v1, s62, v1")
    e("v_lshlrev_b32 v2, 1, v1")
    e(f"s_mul_i32 s63, s61, {8*D*2}")
    for i in range(8):
        e(f"s_add_u32 s64, s63, {i*D*2}")
        e(f"buffer_load_ushort v{16+i}, v2, s[36:39], s64 offen")
    e("v_lshrrev_b32 v3, 5, v1")
    e("v_mul_u32_u24 v3, 114688, v3")
    e("v_and_b32 v4, 31, v1")
    e("v_lshlrev_b32 v4, 4, v4")
    e("v_add_u32 v3, v3, v4")
    e("s_lshr_b32 s64, s61, 1")
    e("s_lshl_b32 s64, s64, 10")
    e("s_and_b32 s65, s61, 1")
    e("s_lshl_b32 s65, s65, 9")
    e("s_add_u32 s64, s64, s65")
    e("s_waitcnt vmcnt(0)")
    for r in range(4): e(f"v_lshl_or_b32 v{8+r}, v{17+2*r}, 16, v{16+2*r}")
    e("buffer_store_dwordx4 v[8:11], v3, s[40:43], s64 offen")
    e("s_endpgm")

N_CV, N_G1 = 112, 224
CPY = 4224; XOFF = 4*CPY; WVLDS = XOFF + 7680
def gemm_loop(nk, a_srd, b_srd, va, vb, depth=8):
    base = 128
    def issue(kb):
        sl = base + 16*(kb % depth)
        e(f"s_mov_b32 s70, {kb*1024}")
        e(f"buffer_load_dwordx4 v[{sl}:{sl+3}], {va[0]}, {a_srd}, s70 offen")
        e(f"buffer_load_dwordx4 v[{sl+4}:{sl+7}], {va[1]}, {a_srd}, s70 offen")
        e(f"buffer_load_dwordx4 v[{sl+8}:{sl+11}], {vb[0]}, {b_srd}, s70 offen")
        e(f"buffer_load_dwordx4 v[{sl+12}:{sl+15}], {vb[1]}, {b_srd}, s70 offen")
    for r in range(64, 128): e(f"v_mov_b32 v{r}, 0")
    for kb in range(min(depth-1, nk)): issue(kb)
    for kb in range(nk):
        if kb + depth - 1 < nk:
            issue(kb + depth - 1); e(f"s_waitcnt vmcnt({4*(depth-1)})")
        else:
            e(f"s_waitcnt vmcnt({4*(nk-1-kb)})")
        sl = base + 16*(kb % depth)
        for i in range(2):
            for j in range(2):
                a = 64 + 16*(2*i+j)
                e(f"v_mfma_f32_32x32x16_bf16 v[{a}:{a+15}], v[{sl+4*i}:{sl+4*i+3}], v[{sl+8+4*j}:{sl+8+4*j+3}], v[{a}:{a+15}]")
    nop(16)

def kernel2():
    out.append(".globl mid_kernel"); out.append(".p2align 8"); out.append(".type mid_kernel,@function")
    lab("mid_kernel")
    load_ptrs()
    e(f"s_cmp_lt_u32 s2, {N_CV}")
    e("s_cbranch_scc1 M_CONV")
    e(f"s_cmp_lt_u32 s2, {N_CV+N_G1}")
    e("s_cbranch_scc1 M_G1")
    e("s_endpgm")
    lab("M_CONV")
    srd(36, P_WS, D*4096, WS_KC); srd(40, P_WS, L*D*2, WS_XNT); srd(44, P_WS, L*D*2, WS_ST); srd(48, P_DSK, D*2)
    e("v_and_b32 v1, 63, v0"); e("v_lshrrev_b32 v2, 6, v0"); e("s_nop 0")
    e("v_readfirstlane_b32 s60, v2")
    e("s_lshl_b32 s61, s2, 2"); e("s_add_u32 s61, s61, s60")
    e(f"s_mul_i32 s62, s60, {WVLDS}")
    e("s_lshl_b32 s63, s61, 12")
    e("s_lshl_b32 s64, s61, 1")
    e("v_mov_b32 v3, 0")
    e("buffer_load_ushort v60, v3, s[48:51], s64 offen")
    e("v_lshlrev_b32 v3, 4, v1")
    for t in range(4): e(f"buffer_load_dwordx4 v[{8+4*t}:{11+4*t}], v3, s[40:43], s63 offen offset:{t*1024}")
    for r in range(4,8): e(f"v_mov_b32 v{r}, 0")
    e(f"v_add_u32 v30, s62, v3")
    for t in range(2): e(f"ds_write_b128 v30, v[4:7] offset:{XOFF+t*1024}")
    e("v_cmp_gt_u32 vcc, 32, v1"); e("s_and_saveexec_b64 s[66:67], vcc")
    e(f"ds_write_b128 v30, v[4:7] offset:{XOFF+2048}")
    e("s_mov_b64 exec, s[66:67]")
    e("v_lshrrev_b32 v31, 2, v1"); e("v_mul_u32_u24 v31, 80, v31"); e("v_and_b32 v32, 3, v1"); e("v_lshlrev_b32 v32, 4, v32")
    e("v_add_u32 v31, v31, v32"); e("v_add_u32 v31, s62, v31")
    e("s_waitcnt vmcnt(0)")
    for t in range(4): e(f"ds_write_b128 v31, v[{8+4*t}:{11+4*t}] offset:{XOFF+2560+t*1280}")
    e("v_lshlrev_b32 v33, 1, v1"); e("v_add_u32 v33, s62, v33")
    for t in range(33):
        e(f"v_sub_u32 v8, {2047-64*t}, v1")
        e("v_max_i32 v9, 1, v8")
        e("v_ffbh_u32 v10, v9")
        e("v_sub_u32 v10, 24, v10"); e("v_max_i32 v10, 0, v10")
        e("v_lshlrev_b32 v11, v10, 64"); e("v_lshlrev_b32 v11, 1, v11"); e("v_cmp_eq_u32 vcc, 0, v10"); e("s_nop 1")
        e("v_cndmask_b32 v11, v11, 0, vcc")
        e("v_sub_u32 v12, v8, v11")
        e("v_lshrrev_b32 v13, v10, v12"); e("v_and_b32 v13, 1, v13")
        e("v_lshlrev_b32 v14, v10, 1"); e("v_lshrrev_b32 v14, 1, v14")
        e("v_add3_u32 v13, v13, v14, v12"); e("v_add_u32 v13, -1, v13"); e("v_lshrrev_b32 v13, v10, v13")
        e("v_cndmask_b32 v13, v13, v12, vcc")
        e("v_lshlrev_b32 v10, 8, v10"); e("v_add_u32 v13, v13, v10"); e("v_lshlrev_b32 v13, 2, v13")
        e("v_cmp_gt_i32 vcc, 0, v8"); e("s_nop 1")
        e("v_cndmask_b32 v13, v13, -4, vcc")
        e(f"buffer_load_dword v{64+t}, v13, s[36:39], s63 offen")
    e("s_waitcnt vmcnt(0)")
    for t in range(33):
        e(f"v_cvt_f16_f32 v{64+t}, v{64+t}")
        for ph in range(4):
            off = ph*CPY + t*128 - ph*2
            if off < 0:
                e(f"v_cmp_le_u32 vcc, {ph}, v1"); e("s_and_saveexec_b64 s[66:67], vcc")
                e(f"v_add_u32 v34, {off}, v33"); e(f"ds_write_b16 v34, v{64+t}"); e("s_mov_b64 exec, s[66:67]")
            else:
                e(f"ds_write_b16 v33, v{64+t} offset:{off}")
    e("v_and_b32 v8, 31, v1"); e("v_lshrrev_b32 v9, 5, v1")
    e("v_lshlrev_b32 v10, 3, v9"); e("v_sub_u32 v10, v10, v8"); e("v_add_u32 v10, 31, v10")
    e("v_sub_u32 v11, 3, v8"); e("v_and_b32 v11, 3, v11")
    e("v_sub_u32 v10, v10, v11"); e("v_lshlrev_b32 v10, 1, v10")
    e(f"v_mul_u32_u24 v11, {CPY}, v11"); e("v_add_u32 v10, v10, v11"); e("v_add_u32 v10, s62, v10")
    e("v_mul_u32_u24 v12, 80, v8"); e("v_lshlrev_b32 v13, 4, v9"); e("v_add_u32 v12, v12, v13"); e("v_add_u32 v12, s62, v12")
    for r in range(96, 128): e(f"v_mov_b32 v{r}, 0")
    e("s_waitcnt lgkmcnt(0)")
    steps = [(dl, ks) for dl in range(64) for ks in range(2)]
    def rd(n):
        dl, ks = steps[n]; b = 128 + 16*(n % 4); ao = (63-dl)*64 + 32*ks
        e(f"ds_read_b64 v[{b}:{b+1}], v10 offset:{ao}"); e(f"ds_read_b64 v[{b+2}:{b+3}], v10 offset:{ao+8}")
        e(f"ds_read_b128 v[{b+8}:{b+11}], v12 offset:{XOFF+(64-dl)*80+32*ks}")
        e(f"ds_read_b128 v[{b+4}:{b+7}], v12 offset:{XOFF+(32-min(dl,31))*80+32*ks}")
    for n in range(3): rd(n)
    for n, (dl, ks) in enumerate(steps):
        if n + 3 < len(steps): rd(n+3); e("s_waitcnt lgkmcnt(12)")
        else: e(f"s_waitcnt lgkmcnt({4*(len(steps)-1-n)})")
        b = 128 + 16*(n % 4)
        e(f"v_mfma_f32_32x32x16_f16 v[112:127], v[{b}:{b+3}], v[{b+8}:{b+11}], v[112:127]")
        if dl < 32: e(f"v_mfma_f32_32x32x16_f16 v[96:111], v[{b}:{b+3}], v[{b+4}:{b+7}], v[96:111]")
    nop(16)
    e("v_lshlrev_b32 v60, 16, v60")
    e("v_lshlrev_b32 v14, 6, v8"); e("v_lshlrev_b32 v15, 3, v9"); e("v_add_u32 v14, v14, v15")
    e("v_mul_u32_u24 v12, 80, v8"); e("v_add_u32 v12, v12, v15"); e("v_add_u32 v12, s62, v12")
    for ab in range(2):
        for jg in range(4):
            e(f"ds_read_b64 v[16:17], v12 offset:{XOFF+(32*ab+32)*80+16*jg}")
            e("s_waitcnt lgkmcnt(0)")
            e("v_cvt_f32_f16 v20, v16"); e("v_lshrrev_b32 v16, 16, v16"); e("v_cvt_f32_f16 v21, v16")
            e("v_cvt_f32_f16 v22, v17"); e("v_lshrrev_b32 v17, 16, v17"); e("v_cvt_f32_f16 v23, v17")
            for r in range(4):
                a = 96+16*ab+4*jg+r
                e(f"v_mul_f32 v{20+r}, v{20+r}, v60"); bf16r(f"v{20+r}"); bf16r(f"v{a}")
                e(f"v_add_f32 v{20+r}, v{20+r}, v{a}")
            e("v_cvt_pk_bf16_f32 v24, v20, v21"); e("v_cvt_pk_bf16_f32 v25, v22, v23")
            e(f"buffer_store_dwordx2 v[24:25], v14, s[44:47], s63 offen offset:{ab*2048+16*jg}")
    e("s_endpgm")

    lab("M_G1")
    srd(36, P_WS, D*F*2, WS_W1); srd(40, P_WS, L*D*2, WS_XN); srd(44, P_WS, L*F*2, WS_H); srd(48, P_B1, F*2)
    e(f"s_sub_u32 s60, s2, {N_CV}")
    e("s_mul_hi_u32 s61, s60, 0x12492493")
    e("s_mul_i32 s62, s61, 14"); e("s_sub_u32 s62, s60, s62")
    e("v_and_b32 v1, 63, v0"); e("v_lshrrev_b32 v2, 6, v0"); e("s_nop 0"); e("v_readfirstlane_b32 s63, v2")
    e("s_and_b32 s64, s63, 1"); e("s_lshr_b32 s65, s63, 1")
    e("s_lshl_b32 s66, s62, 2"); e("s_lshl_b32 s64, s64, 1"); e("s_add_u32 s66, s66, s64")
    e("s_lshl_b32 s67, s61, 2"); e("s_lshl_b32 s65, s65, 1"); e("s_add_u32 s67, s67, s65")
    e("v_lshlrev_b32 v3, 4, v1")
    e("s_mul_i32 s68, s66, 28672"); e("v_add_u32 v4, s68, v3"); e("v_add_u32 v5, 28672, v4")
    e("s_mul_i32 s68, s67, 28672"); e("v_add_u32 v6, s68, v3"); e("v_add_u32 v7, 28672, v6")
    gemm_loop(28, "s[36:39]", "s[40:43]", ("v4","v5"), ("v6","v7"))
    e("v_lshrrev_b32 v8, 5, v1"); e("v_lshlrev_b32 v8, 3, v8")
    e("s_lshl_b32 s68, s66, 6")
    for i in range(2):
        for jg in range(4):
            e(f"buffer_load_dwordx2 v[{128+8*i+2*jg}:{129+8*i+2*jg}], v8, s[48:51], s68 offen offset:{i*64+16*jg}")
    e("s_waitcnt vmcnt(0)")
    for i in range(2):
        for j in range(2):
            a0 = 64+16*(2*i+j)
            for jg in range(4):
                bb = 128+8*i+2*jg
                e(f"v_lshlrev_b32 v10, 16, v{bb}"); e(f"v_and_b32 v11, 0xffff0000, v{bb}")
                e(f"v_lshlrev_b32 v12, 16, v{bb+1}"); e(f"v_and_b32 v13, 0xffff0000, v{bb+1}")
                for r in range(4):
                    a = a0+4*jg+r
                    bf16r(f"v{a}"); e(f"v_add_f32 v{a}, v{a}, v{10+r}"); bf16r(f"v{a}")
                    e(f"v_max_f32 v{a}, 0, v{a}"); e(f"v_mul_f32 v{a}, v{a}, v{a}")
                e(f"v_cvt_pk_bf16_f32 v{16+2*jg}, v{a0+4*jg}, v{a0+4*jg+1}")
                e(f"v_cvt_pk_bf16_f32 v{17+2*jg}, v{a0+4*jg+2}, v{a0+4*jg+3}")
            nop(2)
            for hh in range(2):
                p = 16+4*hh
                e(f"v_permlane32_swap_b32 v{p}, v{p+2}"); e(f"v_permlane32_swap_b32 v{p+1}, v{p+3}")
            e(f"s_add_u32 s69, s67, {j}"); e("s_mul_i32 s69, s69, 112")
            e(f"s_lshl_b32 s70, s66, 1"); e("s_add_u32 s69, s69, s70"); e(f"s_add_u32 s69, s69, {2*i}"); e("s_lshl_b32 s69, s69, 10")
            e("buffer_store_dwordx4 v[16:19], v3, s[44:47], s69 offen")
            e("buffer_store_dwordx4 v[20:23], v3, s[44:47], s69 offen offset:1024")
            nop(2)
    e("s_endpgm")

N_G2 = 224
def kernel3():
    out.append(".globl fin_kernel"); out.append(".p2align 8"); out.append(".type fin_kernel,@function")
    lab("fin_kernel")
    load_ptrs()
    e(f"s_cmp_lt_u32 s2, {N_G2}"); e("s_cbranch_scc1 F_GO"); e("s_endpgm")
    lab("F_GO")
    srd(36, P_WS, D*F*2, WS_W2); srd(40, P_WS, L*F*2, WS_H); srd(44, P_WS, L*D*2, WS_ST); srd(48, P_B2, D*2)
    srd(52, P_U, L*D*2); srd(56, P_OUT, L*D*2)
    e("s_mul_hi_u32 s61, s2, 0x24924925"); e("s_mul_i32 s62, s61, 7"); e("s_sub_u32 s62, s2, s62")
    e("v_and_b32 v1, 63, v0"); e("v_lshrrev_b32 v2, 6, v0"); e("s_nop 0"); e("v_readfirstlane_b32 s63, v2")
    e("v_lshlrev_b32 v3, 4, v1")
    e("s_mul_i32 s64, s63, 28672")
    e("s_mul_i32 s68, s62, 229376"); e("s_add_u32 s68, s68, s64"); e("v_add_u32 v4, s68, v3"); e("v_add_u32 v5, 114688, v4")
    e("s_mul_i32 s68, s61, 229376"); e("s_add_u32 s68, s68, s64"); e("v_add_u32 v6, s68, v3"); e("v_add_u32 v7, 114688, v6")
    gemm_loop(28, "s[36:39]", "s[40:43]", ("v4","v5"), ("v6","v7"))
    e("v_lshlrev_b32 v8, 4, v1")
    for t in range(4):
        e(f"s_lshl_b32 s70, s63, 12"); e(f"s_add_u32 s70, s70, {t*16384}"); e("v_add_u32 v9, s70, v8")
        for q in range(4): e(f"ds_write_b128 v9, v[{64+16*t+4*q}:{67+16*t+4*q}] offset:{q*1024}")
    e("s_waitcnt lgkmcnt(0)"); e("s_barrier")
    e("s_lshl_b32 s70, s63, 14"); e("v_add_u32 v9, s70, v8")
    for w in range(4):
        for q in range(4): e(f"ds_read_b128 v[{128+16*w+4*q}:{131+16*w+4*q}], v9 offset:{w*4096+q*1024}")
    e("s_waitcnt lgkmcnt(0)")
    for r in range(16):
        e(f"v_add_f32 v{64+r}, v{128+r}, v{144+r}"); e(f"v_add_f32 v{80+r}, v{160+r}, v{176+r}"); e(f"v_add_f32 v{64+r}, v{64+r}, v{80+r}")
    e("s_lshr_b32 s64, s63, 1"); e("s_and_b32 s65, s63, 1")
    e("s_lshl_b32 s66, s62, 6"); e("s_lshl_b32 s64, s64, 5"); e("s_add_u32 s66, s66, s64")
    e("s_lshl_b32 s67, s61, 6"); e("s_lshl_b32 s65, s65, 5"); e("s_add_u32 s67, s67, s65")
    e("v_and_b32 v10, 31, v1"); e("v_lshrrev_b32 v11, 5, v1")
    e("v_add_u32 v12, s67, v10")
    e("v_lshlrev_b32 v13, 2, v11"); e("v_add_u32 v13, s66, v13")
    e("v_mul_u32_u24 v14, 896, v12"); e("v_lshlrev_b32 v15, 1, v13"); e("v_add_u32 v14, v14, v15")
    e("v_lshlrev_b32 v16, 12, v13"); e("v_lshlrev_b32 v17, 1, v12"); e("v_add_u32 v16, v16, v17")
    for jg in range(4):
        e(f"buffer_load_dwordx2 v[{128+2*jg}:{129+2*jg}], v14, s[52:55], 0 offen offset:{16*jg}")
        e(f"buffer_load_dwordx2 v[{136+2*jg}:{137+2*jg}], v15, s[48:51], 0 offen offset:{16*jg}")
        for r in range(4):
            e(f"s_mov_b32 s70, {(8*jg+r)*4096}")
            e(f"buffer_load_ushort v{144+4*jg+r}, v16, s[44:47], s70 offen")
    e("s_waitcnt vmcnt(0)")
    for jg in range(4):
        for (src, dst) in ((128, 20), (136, 24)):
            e(f"v_lshlrev_b32 v{dst}, 16, v{src+2*jg}"); e(f"v_and_b32 v{dst+1}, 0xffff0000, v{src+2*jg}")
            e(f"v_lshlrev_b32 v{dst+2}, 16, v{src+1+2*jg}"); e(f"v_and_b32 v{dst+3}, 0xffff0000, v{src+1+2*jg}")
        for r in range(4):
            a = 64+4*jg+r
            bf16r(f"v{a}"); e(f"v_add_f32 v{a}, v{a}, v{24+r}"); bf16r(f"v{a}")
            e(f"v_mul_f32 v28, {fhex(-LOG2E)}, v{a}"); e("v_exp_f32 v28, v28"); e("s_nop 0")
            e("v_add_f32 v28, 1.0, v28"); e("v_rcp_f32 v28, v28"); e("s_nop 0")
            e(f"v_mul_f32 v{a}, v{a}, v28"); bf16r(f"v{a}")
            e(f"v_lshlrev_b32 v29, 16, v{144+4*jg+r}"); e(f"v_mul_f32 v{a}, v{a}, v29"); bf16r(f"v{a}")
            e(f"v_add_f32 v{a}, v{a}, v{20+r}")
        e(f"v_cvt_pk_bf16_f32 v{30+2*jg}, v{64+4*jg}, v{65+4*jg}"); e(f"v_cvt_pk_bf16_f32 v{31+2*jg}, v{66+4*jg}, v{67+4*jg}")
        e(f"buffer_store_dwordx2 v[{30+2*jg}:{31+2*jg}], v14, s[56:59], 0 offen offset:{16*jg}")
    e("s_endpgm")

def descriptor(name, vgpr=128):
    out.append(f""".section .rodata,"a"
.p2align 6
.amdhsa_kernel {name}
  .amdhsa_next_free_vgpr {vgpr}
  .amdhsa_next_free_sgpr 102
  .amdhsa_accum_offset {vgpr}
  .amdhsa_group_segment_fixed_size 0
  .amdhsa_kernarg_size 120
  .amdhsa_user_sgpr_count 2
  .amdhsa_user_sgpr_kernarg_segment_ptr 1
  .amdhsa_system_sgpr_workgroup_id_x 1
.end_amdhsa_kernel
.text""")

def main(path):
    hdr = [f"; @launch kernel=prep_kernel grid=({N_KG+N_LN+N_T1+N_T2},1,1) block=(256,1,1) lds=69632"]
    out.append('.amdgcn_target "amdgcn-amd-amdhsa--gfx950"')
    out.append(".text")
    kernel1(); descriptor("prep_kernel")
    kernel2(); descriptor("mid_kernel", 256)
    kernel3(); descriptor("fin_kernel", 256)
    hdr.append(f"; @launch kernel=mid_kernel grid=({N_CV+N_G1},1,1) block=(256,1,1) lds={4*WVLDS}")
    hdr.append(f"; @launch kernel=fin_kernel grid=({N_G2},1,1) block=(256,1,1) lds=65536")
    open(path, "w").write("\n".join(hdr + out) + "\n")
if __name__ == "__main__":
    main(sys.argv[1] if len(sys.argv) > 1 else f"cdna_kernels/{NAME}.s")
```
